```python
import torch

def _softmax(x, axis=-1):
    return torch.softmax(x, dim=axis)
def _gelu(x):
    return torch.nn.functional.gelu(x, approximate="tanh")
def _silu(x):
    return torch.nn.functional.silu(x)
def _sigmoid(x):
    return torch.sigmoid(x)
def _layernorm(x, axis=-1, eps=1e-5):
    m = x.mean(dim=axis, keepdim=True)
    v = x.var(dim=axis, keepdim=True, unbiased=False)
    return (x - m) / torch.sqrt(v + eps)
def _scatter_add(tgt, idx, src, axis=0):
    return tgt.clone().index_add_(axis, idx, src)
def _segment_sum(src, seg, n):
    out = torch.zeros((n,) + src.shape[1:], dtype=src.dtype)
    return out.index_add_(0, seg, src)
def _pad(x, pw):
    flat = tuple(v for pair in reversed(pw) for v in pair)
    return torch.nn.functional.pad(x, flat)

kernel_name = 'recurrent_scan__sliding_block_cached__dense_activation_silu__prompt'

def setup_inputs():

    _w = (lambda a: (lambda t: t.to(torch.bfloat16) if t.is_floating_point() else t)(torch.as_tensor(a)))
    def _A_setup():
        B, Sq, D = 1, 2048, 1024
        Hq, Hkv, Sk, Dh = 32, 4, 2048, 128
        assert Hq % Hkv == 0, (Hq, Hkv)
        return {
            "x": _w((lambda *s: torch.randn(*s, dtype=torch.bfloat16) * 0.05)(B, Sq, D)),
            "k_cache": _w((lambda *s: torch.randn(*s, dtype=torch.bfloat16) * 3.2)(B, Hkv, Sk, Dh)),
            "v_cache": _w((lambda *s: torch.randn(*s, dtype=torch.bfloat16) * 3.2)(B, Hkv, Sk, Dh)),
            "wq": _w((lambda *s: torch.randn(*s, dtype=torch.bfloat16) * 3.2)(D, Hq * Dh) * (D ** -0.5)),
            "wo": _w((lambda *s: torch.randn(*s, dtype=torch.bfloat16) * 3.2)(Hq * Dh, D) * ((Hq * Dh) ** -0.5)),
        }
    _A_in = _A_setup()

    def _B_setup():
        B, S, D, F = 1, 2048, 1024, 3584
        return {
            "x": _w((lambda *s: torch.randn(*s, dtype=torch.bfloat16) * 0.05)(B, S, D)),
            "w1": _w((lambda *s: torch.randn(*s, dtype=torch.bfloat16) * 3.2)(D, F) * (D ** -0.5)),
            "w2": _w((lambda *s: torch.randn(*s, dtype=torch.bfloat16) * 0.4)(F, D) * (F ** -0.5)),
        }
    _B_in = _B_setup()

    return {
        "A_x": _A_in["x"],
        "A_k_cache": _A_in["k_cache"],
        "A_v_cache": _A_in["v_cache"],
        "A_wq": _A_in["wq"],
        "A_wo": _A_in["wo"],
        "B_x": _B_in["x"],
        "B_w1": _B_in["w1"],
        "B_w2": _B_in["w2"],
    }

def reference(A_x, A_k_cache, A_v_cache, A_wq, A_wo, B_x, B_w1, B_w2):
    def _A_ref(x, k_cache, v_cache, wq, wo):
        B, Sq, D = x.shape
        Hq, Dh = 32, 128
        Hkv, Sk = k_cache.shape[1], k_cache.shape[2]
        W = min(4096, max(256, Sk // 4))
        rep = Hq // Hkv
        q = (lambda x, *d: x.permute(*d))((x @ wq).reshape(B, Sq, Hq, Dh), 0, 2, 1, 3)
        k = (lambda x, n, axis: torch.repeat_interleave(x, n, dim=axis))(k_cache[:, :, Sk - W:, :], rep, axis=1)
        v = (lambda x, n, axis: torch.repeat_interleave(x, n, dim=axis))(v_cache[:, :, Sk - W:, :], rep, axis=1)
        scores = torch.einsum("bhqd,bhkd->bhqk", q, k) * (Dh ** -0.5)
        p = _softmax(scores, axis=-1)
        o = torch.einsum("bhqk,bhkd->bhqd", p, v)
        return (lambda x, *d: x.permute(*d))(o, 0, 2, 1, 3).reshape(B, Sq, Hq * Dh) @ wo

    def _B_ref(x, w1, w2):
        h = torch.einsum("bsd,df->bsf", x, w1)
        h = _silu(h)
        out = torch.einsum("bsf,fd->bsd", h, w2)
        return out

    x = A_x
    xn = _layernorm(x, axis=-1)
    s = _A_ref(xn, A_k_cache, A_v_cache, A_wq, A_wo)
    g = _silu(_B_ref(xn, B_w1, B_w2))
    return x + s * g
```

```python
import re

REG_RE = re.compile(r'^(-?)(?:abs\()?([vas])(?:(\d+)|\[(\d+):(\d+)\])\)?$')
TRANS = ('v_exp_f32', 'v_log_f32', 'v_rcp_f32', 'v_rsq_f32', 'v_sqrt_f32', 'v_sin_f32', 'v_cos_f32')


def regs_of(tok):
    tok = tok.strip()
    if tok in ('vcc', 'exec', 'm0', 'scc'):
        return [(tok, 0)]
    if tok in ('vcc_lo', 'vcc_hi'):
        return [('vcc', 0)]
    if tok in ('exec_lo', 'exec_hi'):
        return [('exec', 0)]
    m = REG_RE.match(tok)
    if not m:
        return []
    f = m.group(2)
    if m.group(3) is not None:
        return [(f, int(m.group(3)))]
    return [(f, i) for i in range(int(m.group(4)), int(m.group(5)) + 1)]


class Wait:
    def __init__(self):
        self.vm = None
        self.lgkm = None

    def upd(self, vm=None, lgkm=None):
        if vm is not None:
            vm = min(vm, 63)
            self.vm = vm if self.vm is None else min(self.vm, vm)
        if lgkm is not None:
            lgkm = min(lgkm, 15)
            self.lgkm = lgkm if self.lgkm is None else min(self.lgkm, lgkm)

    def text(self):
        p = []
        if self.vm is not None:
            p.append('vmcnt(%d)' % self.vm)
        if self.lgkm is not None:
            p.append('lgkmcnt(%d)' % self.lgkm)
        assert p
        return 's_waitcnt ' + ' '.join(p)


class Ins:
    __slots__ = ('text', 'mn', 'kind', 'w', 'r', 'A', 'B', 'C', 'D', 'passes', 'wait', 'meta', 'nops', 'data')

    def __init__(self, text, wait=None, meta=None):
        self.text = text
        self.wait = wait
        self.meta = meta or {}
        self.w = []
        self.r = []
        self.A = self.B = self.C = self.D = None
        self.passes = 0
        self.nops = 1
        self.data = []
        if wait is not None:
            self.mn = 's_waitcnt'
            self.kind = 'wait'
            return
        t = text.split(';')[0].strip()
        parts = t.split(None, 1)
        mn = parts[0]
        self.mn = mn
        ops = []
        if len(parts) > 1:
            cur = ''
            depth = 0
            for ch in parts[1]:
                if ch in '[(':
                    depth += 1
                if ch in '])':
                    depth -= 1
                if ch == ',' and depth == 0:
                    ops.append(cur.strip())
                    cur = ''
                else:
                    cur += ch
            ops.append(cur.strip())
        mods = []
        if ops:
            lp = ops[-1].split()
            ops[-1] = lp[0] if lp else ''
            mods = lp[1:]
        R = [regs_of(o) for o in ops]
        if mn.startswith('v_mfma'):
            self.kind = 'mfma'
            self.D, self.A, self.B, self.C = R[0], R[1], R[2], R[3]
            self.w = R[0]
            self.r = R[1] + R[2] + R[3]
            if '32x32x16' in mn:
                self.passes = 8
            elif '16x16x32' in mn:
                self.passes = 4
            elif '4x4x4' in mn:
                self.passes = 2
            else:
                raise ValueError(mn)
        elif mn.startswith('v_'):
            self.kind = 'valu'
            if mn.startswith('v_cmp'):
                self.w = R[0]
                self.r = sum(R[1:], [])
            elif mn.startswith('v_permlane') and 'swap' in mn:
                self.w = R[0] + R[1]
                self.r = R[0] + R[1]
            elif mn.startswith(('v_add_co', 'v_sub_co', 'v_addc_co', 'v_subb_co')):
                self.w = R[0] + R[1]
                self.r = sum(R[2:], [])
            elif mn in ('v_nop',):
                pass
            else:
                self.w = R[0]
                self.r = sum(R[1:], [])
                if mn.startswith(('v_fmac', 'v_dot2c', 'v_pk_fmac')) or 'dpp' in mn:
                    self.r = self.r + R[0]
                if mn.startswith('v_cndmask') and len(R) == 3:
                    self.r = self.r + [('vcc', 0)]
        elif mn.startswith('ds_'):
            self.kind = 'ds'
            if mn.startswith(('ds_read', 'ds_bpermute', 'ds_permute', 'ds_swizzle')) or '_rtn' in mn:
                self.w = R[0]
                self.r = sum(R[1:], [])
            else:
                self.r = sum(R, [])
                self.data = sum(R[1:], [])
        elif mn.startswith(('buffer_', 'global_')):
            self.kind = 'vmem'
            if mn in ('buffer_wbl2', 'buffer_inv'):
                pass
            elif 'lds' in mods or '_lds_' in mn:
                self.r = sum(R, []) + [('m0', 0)]
                self.meta.setdefault('dma', True)
            elif '_load' in mn:
                self.w = R[0]
                self.r = sum(R[1:], [])
                if 'd16' in mn:
                    self.r = self.r + R[0]
            elif 'atomic' in mn:
                self.r = sum(R, [])
                if 'sc0' in mods:
                    self.w = R[0]
            else:
                self.r = sum(R, [])
                self.data = R[0] if mn.startswith('buffer_') else R[1]
        elif mn.startswith('s_'):
            if mn in ('s_waitcnt',):
                self.kind = 'wait'
                w = Wait()
                m = re.search(r'vmcnt\((\d+)\)', t)
                if m:
                    w.vm = int(m.group(1))
                m = re.search(r'lgkmcnt\((\d+)\)', t)
                if m:
                    w.lgkm = int(m.group(1))
                self.wait = w
            elif mn == 's_barrier':
                self.kind = 'barrier'
            elif mn == 's_nop':
                self.kind = 'nop'
                self.nops = int(ops[0], 0) + 1
            elif mn.startswith(('s_load', 's_memtime', 's_memrealtime', 's_buffer_load')):
                self.kind = 'smem'
                self.w = R[0]
                self.r = sum(R[1:], [])
            elif mn.startswith(('s_cmp', 's_bitcmp')):
                self.kind = 'salu'
                self.w = [('scc', 0)]
                self.r = sum(R, [])
            elif mn.startswith(('s_cbranch', 's_branch', 's_endpgm', 's_setprio', 's_sleep')):
                self.kind = 'salu'
                if 'scc' in mn:
                    self.r = [('scc', 0)]
                if 'vcc' in mn:
                    self.r = [('vcc', 0)]
            else:
                self.kind = 'salu'
                self.w = R[0] + [('scc', 0)]
                self.r = sum(R[1:], [])
                if 'saveexec' in mn:
                    self.w = self.w + [('exec', 0)]
                if mn.startswith(('s_cselect', 's_addc', 's_subb')):
                    self.r = self.r + [('scc', 0)]
                if mn.startswith(('s_mov', 's_cselect', 's_getreg', 's_mul_i32', 's_movk')):
                    self.w = R[0]
        else:
            raise ValueError('unknown instruction ' + text)

    def out(self):
        if self.text is None:
            return self.wait.text()
        return self.text


class Kern:
    def __init__(self, name):
        self.name = name
        self.static = []
        self.trace = []
        self.vm_n = 0
        self.lg_n = 0
        self.vm_tag = {}
        self.lg_tag = {}
        self._loop = None
        self._first = True
        self._lbl = 0

    def _put(self, ins):
        if self._loop is None or self._first:
            self.static.append(ins)
            if self._loop is not None:
                self._loop.append(ins)
            st = ins
        else:
            st = self._loop[self._pos]
            self._pos += 1
            if isinstance(ins, Ins):
                if ins.text is None:
                    assert isinstance(st, Ins) and st.text is None, (st.out(), 'vs wait')
                    st.wait.upd(ins.wait.vm, ins.wait.lgkm)
                    ins.wait = st.wait
                else:
                    assert isinstance(st, Ins) and st.text == ins.text, ('loop body mismatch', st if isinstance(st, str) else st.out(), ins.text)
            else:
                assert st == ins, ('loop body mismatch', st, ins)
        if isinstance(ins, Ins):
            self.trace.append(ins)

    def e(self, text, tag=None, **meta):
        ins = Ins(text, meta=meta)
        if ins.kind == 'vmem' and ins.mn != 'buffer_inv_':
            if tag is not None:
                self.vm_tag[tag] = self.vm_n
            self.vm_n += 1
        elif ins.kind == 'ds':
            if tag is not None:
                self.lg_tag[tag] = self.lg_n
            self.lg_n += 1
        self._put(ins)
        return ins

    def label(self, name):
        self._put(name + ':')

    def comment(self, c):
        self._put('; ' + c)

    def newlabel(self, base):
        self._lbl += 1
        return 'L_%s_%s_%d' % (self.name, base, self._lbl)

    def wait(self, vm=(), lg=(), vm0=False, lg0=False):
        w = Wait()
        if vm0:
            w.upd(vm=0)
        elif vm:
            last = max(self.vm_tag[t] for t in vm)
            w.upd(vm=self.vm_n - 1 - last)
        if lg0:
            w.upd(lgkm=0)
        elif lg:
            last = max(self.lg_tag[t] for t in lg)
            w.upd(lgkm=self.lg_n - 1 - last)
        ins = Ins(None, wait=w)
        self._put(ins)

    def loop(self, n, body):
        assert self._loop is None
        self._loop = []
        for it in range(n):
            self._first = (it == 0)
            self._pos = 0
            body(it)
            if it > 0:
                assert self._pos == len(self._loop), 'loop body length mismatch'
        self._loop = None
        self._first = True

    def text(self):
        out = []
        for s in self.static:
            if isinstance(s, Ins):
                out.append('  ' + s.out())
            else:
                out.append(s)
        return '\n'.join(out) + '\n'

    def check(self, verbose=False):
        errs = []
        tr = self.trace
        pos = []
        p = 0
        for ins in tr:
            pos.append(p)
            p += ins.nops
        last_w = {}
        last_mfma_c = {}
        last_store = {}
        vmq = []
        lgq = []
        pend = {}
        dma_done = {}
        dma_issued = {}
        dma_visible = {}
        slot_tag = {}
        rd_issued = {}
        rd_done = {}
        rd_safe = {}

        def dist(i, j):
            return pos[j] - pos[i] - tr[i].nops

        def need(i, j, n, why):
            if dist(i, j) < n:
                errs.append('hazard %s: need %d have %d\n   %s\n   %s' % (why, n, dist(i, j), tr[i].out(), tr[j].out()))

        for j, ins in enumerate(tr):
            k = ins.kind
            if k == 'wait':
                w = ins.wait
                if w.vm is not None:
                    while len(vmq) > w.vm:
                        i, regs, meta = vmq.pop(0)
                        for r in regs:
                            if pend.get(r) == ('vm', i):
                                del pend[r]
                        if 'lds_w' in meta:
                            dma_done[meta['lds_w']] = dma_done.get(meta['lds_w'], 0) + 1
                if w.lgkm is not None:
                    while len(lgq) > w.lgkm:
                        i, regs, meta = lgq.pop(0)
                        for r in regs:
                            if pend.get(r) == ('lg', i):
                                del pend[r]
                        if 'lds_r' in meta:
                            rd_done[meta['lds_r']] = rd_done.get(meta['lds_r'], 0) + 1
                        if 'lds_w' in meta:
                            dma_done[meta['lds_w']] = dma_done.get(meta['lds_w'], 0) + 1
                continue
            if k == 'barrier':
                dma_visible = dict(dma_done)
                rd_safe = dict(rd_done)
                continue
            if k == 'nop':
                continue
            for r in ins.r + ins.w:
                if r in pend:
                    errs.append('reg %s%d used while load pending: %s  (load: %s)' % (r[0], r[1], ins.out(), tr[pend[r][1]].out()))
            for r in ins.r:
                i = last_w.get(r)
                if i is None:
                    continue
                pr = tr[i]
                if pr.kind == 'mfma':
                    n = {2: 5, 4: 8, 8: 12, 16: 20}[pr.passes]
                    if k == 'mfma':
                        if r in ins.C and r not in ins.A and r not in ins.B:
                            if ins.C == pr.D and ins.passes == pr.passes:
                                need(i, j, 2 if pr.passes == 2 else 0, 'mfma->C same')
                            else:
                                need(i, j, {2: 4, 4: 6, 8: 10, 16: 18}[pr.passes], 'mfma->C overlap')
                        else:
                            need(i, j, n, 'mfma D->A/B')
                    else:
                        need(i, j, n, 'mfma D->read')
                elif pr.kind == 'valu':
                    if k == 'mfma' and r[0] in 'va':
                        need(i, j, 2, 'valu->mfma')
                    if k == 'mfma' and r[0] == 'exec':
                        need(i, j, 4, 'exec->mfma')
                    if r[0] in ('s', 'vcc') and k == 'vmem':
                        need(i, j, 5, 'valu sgpr->vmem')
                    if r[0] in ('s', 'vcc') and k == 'valu':
                        need(i, j, 2, 'valu sgpr->valu')
                        if ins.mn.startswith(('v_readlane', 'v_writelane')):
                            need(i, j, 4, 'valu sgpr->lane select')
                    if k == 'valu' and r[0] == 'v':
                        if pr.mn.replace('_e32', '').replace('_e64', '') in TRANS and ins.mn.replace('_e32', '').replace('_e64', '') not in TRANS:
                            need(i, j, 1, 'trans->valu')
                        if ins.mn.startswith('v_permlane'):
                            need(i, j, 2, 'valu->permlane')
                        if 'dpp' in ins.mn:
                            need(i, j, 2, 'valu->dpp')
                        if ins.mn.startswith(('v_readlane', 'v_readfirstlane')):
                            need(i, j, 1, 'valu->readlane')
                    if k in ('vmem', 'ds') and r[0] == 'v' and pr.mn.replace('_e32', '').replace('_e64', '') in TRANS:
                        need(i, j, 1, 'trans->mem')
                elif pr.kind == 'salu':
                    if r[0] == 'm0' and k == 'vmem':
                        need(i, j, 1, 'm0->dma')
            for r in ins.w:
                i = last_w.get(r)
                if i is not None and tr[i].kind == 'mfma' and k != 'mfma':
                    need(i, j, {2: 5, 4: 8, 8: 12, 16: 20}[tr[i].passes], 'mfma D->write WAW')
                if i is not None and tr[i].kind == 'mfma' and k == 'mfma' and not (ins.C == tr[i].D and ins.D == tr[i].D):
                    need(i, j, {2: 4, 4: 6, 8: 10, 16: 18}[tr[i].passes], 'mfma WAW')
                i = last_mfma_c.get(r)
                if i is not None and k == 'valu':
                    need(i, j, {2: 1, 4: 3, 8: 7, 16: 15}[tr[i].passes], 'mfma C WAR')
                i = last_store.get(r)
                if i is not None:
                    need(i, j, 2 if k == 'valu' else 1, 'store data WAR')
            m = ins.meta
            if 'lds_r' in m:
                t = m['lds_r']
                if dma_issued.get(t, 0) == 0 or dma_visible.get(t, 0) < dma_issued.get(t, 0):
                    errs.append('LDS read of %s not yet visible (%d/%d): %s' % (t, dma_visible.get(t, 0), dma_issued.get(t, 0), ins.out()))
                rd_issued[t] = rd_issued.get(t, 0) + 1
            if 'lds_w' in m:
                t = m['lds_w']
                for sl in m.get('slots', [m.get('slot')]):
                    old = slot_tag.get(sl)
                    if old is not None and old != t:
                        if rd_safe.get(old, 0) < rd_issued.get(old, 0):
                            errs.append('LDS overwrite of slot %s (old %s reads %d/%d safe) by %s' % (sl, old, rd_safe.get(old, 0), rd_issued.get(old, 0), ins.out()))
                    slot_tag[sl] = t
                dma_issued[t] = dma_issued.get(t, 0) + 1
            if k == 'vmem':
                vmq.append((j, ins.w, m))
                for r in ins.w:
                    pend[r] = ('vm', j)
                if len(ins.data) >= 3:
                    for r in ins.data:
                        last_store[r] = j
                if len(vmq) > 63:
                    errs.append('more than 63 vmem outstanding at %s' % ins.out())
            elif k in ('ds', 'smem'):
                lgq.append((j, ins.w, m))
                for r in ins.w:
                    pend[r] = ('lg', j)
            for r in ins.w:
                last_w[r] = j
            if k == 'mfma':
                for r in ins.C:
                    last_mfma_c[r] = j
        seen = []
        for x in errs:
            if x not in seen:
                seen.append(x)
        return seen


def interleave(k, mfmas, fillers, start=0):
    for i, m in enumerate(mfmas):
        emit(k, m)
        for f in fillers.get(i, []):
            emit(k, f)


def emit(k, x):
    if callable(x):
        x()
    else:
        k.e(x)


def spread(items, n_slots, first=0, last=None):
    if last is None:
        last = n_slots - 1
    d = {}
    n = len(items)
    span = last - first + 1
    for i, it in enumerate(items):
        s = first + (i * span) // n
        d.setdefault(s, []).append(it)
    return d


def merge(*ds):
    out = {}
    for d in ds:
        for s, l in d.items():
            out.setdefault(s, []).extend(l)
    return out
```

```python
import sys
from asmgen import *

MB = 1 << 20
XN_OFF = 0
KF_OFF = 4 * MB
VF_OFF = 4 * MB + 512 * 1024
H_OFF = 8 * MB
O_OFF = 24 * MB
G_OFF = 40 * MB
FLAG_OFF = 48 * MB
A_X, A_K, A_V, A_WQ, A_WO, A_BX, A_W1, A_W2, A_OUT, A_DBG, A_WS = [8 * i for i in range(11)]

LOG2E = 1.4426950408889634


def f32(x):
    import struct
    return '0x%08x' % struct.unpack('<I', struct.pack('<f', x))[0]


def srd(k, d, base_lo, base_hi, nrec, off=None):
    if off is None:
        k.e('s_mov_b32 s%d, s%d' % (d, base_lo))
        k.e('s_mov_b32 s%d, s%d' % (d + 1, base_hi))
    else:
        k.e('s_add_u32 s%d, s%d, %s' % (d, base_lo, off))
        k.e('s_addc_u32 s%d, s%d, 0' % (d + 1, base_hi))
    k.e('s_mov_b32 s%d, %s' % (d + 2, nrec))
    k.e('s_mov_b32 s%d, 0x00020000' % (d + 3))


def descriptor(name, vgpr, accum, sgpr=96):
    return '''.section .rodata,"a"
.p2align 6
.amdhsa_kernel %s
  .amdhsa_next_free_vgpr %d
  .amdhsa_next_free_sgpr %d
  .amdhsa_accum_offset %d
  .amdhsa_group_segment_fixed_size 0
  .amdhsa_kernarg_size 88
  .amdhsa_user_sgpr_count 2
  .amdhsa_user_sgpr_kernarg_segment_ptr 1
  .amdhsa_system_sgpr_workgroup_id_x 1
.end_amdhsa_kernel
''' % (name, vgpr, sgpr, accum)


def header(name):
    return '.text\n.globl %s\n.p2align 8\n.type %s,@function\n%s:\n' % (name, name, name)


MFMA = 'v_mfma_f32_16x16x32_bf16'


def vr(b, n=4, f='v'):
    return '%s[%d:%d]' % (f, b, b + n - 1)


def gen_prep():
    k = Kern('prep')
    e = k.e
    e('s_load_dwordx2 s[4:5], s[0:1], %d' % A_X)
    e('s_load_dwordx2 s[6:7], s[0:1], %d' % A_K)
    e('s_load_dwordx2 s[8:9], s[0:1], %d' % A_V)
    e('s_load_dwordx2 s[10:11], s[0:1], %d' % A_WS)
    e('s_waitcnt lgkmcnt(0)')
    srd(k, 12, 4, 5, 4 * MB)
    srd(k, 16, 6, 7, 2 * MB)
    srd(k, 20, 8, 9, 2 * MB)
    srd(k, 24, 10, 11, 64 * MB)
    e('s_cmp_ge_u32 s2, 512')
    e('s_cbranch_scc1 L_prep_done')
    e('s_cmp_ge_u32 s2, 384')
    e('s_cbranch_scc1 L_prep_v')
    e('s_cmp_ge_u32 s2, 256')
    e('s_cbranch_scc1 L_prep_k')
    e('v_and_b32 v1, 7, v0')
    e('v_lshrrev_b32 v2, 3, v0')
    e('v_lshlrev_b32 v3, 11, v1')
    e('v_lshl_add_u32 v3, v2, 4, v3')
    e('s_lshl_b32 s3, s2, 14')
    for i in range(4):
        e('buffer_load_dwordx4 v[%d:%d], v3, s[12:15], s3 offen offset:%d' % (8 + 4 * i, 11 + 4 * i, 512 * i))
    e('v_lshlrev_b32 v4, 2, v0')
    e('s_lshl_b32 s28, s2, 10')
    e('s_add_u32 s28, s28, %d' % FLAG_OFF)
    e('v_mov_b32 v5, 0')
    e('buffer_store_dword v5, v4, s[24:27], s28 offen')
    e('v_mul_u32_u24 v6, 144, v1')
    e('v_lshl_add_u32 v7, v2, 2, v6')
    e('s_waitcnt vmcnt(1)')
    for i in range(16):
        e('v_lshlrev_b32 v%d, 16, v%d' % (32 + 2 * i, 8 + i))
        e('v_and_b32 v%d, 0xffff0000, v%d' % (33 + 2 * i, 8 + i))

    def tree_sum(dst, regs):
        e('v_add_f32 v%d, v%d, v%d' % (dst, regs[0], regs[1]))
        e('v_add_f32 v%d, v%d, v%d' % (dst + 1, regs[2], regs[3]))
        for i in range(4, len(regs), 2):
            e('v_add_f32 v%d, v%d, v%d' % (dst, dst, regs[i]))
            e('v_add_f32 v%d, v%d, v%d' % (dst + 1, dst + 1, regs[i + 1]))
        e('v_add_f32 v%d, v%d, v%d' % (dst, dst, dst + 1))

    def wg_reduce(src, off):
        e('ds_write_b32 v7, v%d offset:%d' % (src, off))
        e('s_waitcnt lgkmcnt(0)')
        e('s_barrier')
        for j in range(8):
            e('ds_read_b128 v[%d:%d], v6 offset:%d' % (64 + 4 * j, 67 + 4 * j, off + 16 * j))
        e('s_waitcnt lgkmcnt(0)')
        tree_sum(src, list(range(64, 96)))

    tree_sum(24, list(range(32, 64)))
    wg_reduce(24, 0)
    e('v_mul_f32 v24, %s, v24' % f32(1.0 / 1024))
    e('v_sub_f32 v64, v32, v24')
    e('v_mul_f32 v26, v64, v64')
    e('v_sub_f32 v65, v33, v24')
    e('v_mul_f32 v27, v65, v65')
    for i in range(2, 32, 2):
        e('v_sub_f32 v64, v%d, v24' % (32 + i))
        e('v_fmac_f32 v26, v64, v64')
        e('v_sub_f32 v65, v%d, v24' % (33 + i))
        e('v_fmac_f32 v27, v65, v65')
    e('v_add_f32 v26, v26, v27')
    wg_reduce(26, 2048)
    e('v_mul_f32 v26, %s, v26' % f32(1.0 / 1024))
    e('v_cvt_pk_bf16_f32 v28, v24, v26')
    e('v_lshlrev_b32 v24, 16, v28')
    e('v_and_b32 v26, 0xffff0000, v28')
    e('v_add_f32 v26, %s, v26' % f32(1e-5))
    e('v_cvt_pk_bf16_f32 v26, v26, v26')
    e('v_lshlrev_b32 v26, 16, v26')
    e('v_sqrt_f32 v26, v26')
    e('s_nop 0')
    e('v_cvt_pk_bf16_f32 v26, v26, v26')
    e('v_lshlrev_b32 v26, 16, v26')
    e('v_rcp_f32 v26, v26')
    e('v_lshrrev_b32 v4, 2, v2')
    e('v_lshlrev_b32 v4, 10, v4')
    e('v_and_b32 v5, 3, v2')
    e('v_lshl_add_u32 v4, v5, 8, v4')
    e('v_lshl_add_u32 v4, v1, 4, v4')
    e('s_lshr_b32 s28, s2, 1')
    e('s_lshl_b32 s28, s28, 15')
    e('s_and_b32 s29, s2, 1')
    e('s_lshl_b32 s29, s29, 7')
    e('s_add_u32 s28, s28, s29')
    for i in range(16):
        a, b = 32 + 2 * i, 33 + 2 * i
        e('v_sub_f32 v%d, v%d, v24' % (a, a))
        e('v_sub_f32 v%d, v%d, v24' % (b, b))
        e('v_cvt_pk_bf16_f32 v%d, v%d, v%d' % (a, a, b))
        e('v_and_b32 v%d, 0xffff0000, v%d' % (b, a))
        e('v_lshlrev_b32 v%d, 16, v%d' % (a, a))
        e('v_mul_f32 v%d, v%d, v26' % (a, a))
        e('v_mul_f32 v%d, v%d, v26' % (b, b))
        e('v_cvt_pk_bf16_f32 v%d, v%d, v%d' % (8 + i, a, b))
    for i in range(4):
        e('s_add_u32 s29, s28, %d' % (XN_OFF + 8192 * i))
        e('buffer_store_dwordx4 v[%d:%d], v4, s[24:27], s29 offen' % (8 + 4 * i, 11 + 4 * i))
    e('s_endpgm')
    k.label('L_prep_k')
    e('s_sub_u32 s3, s2, 256')
    e('s_lshl_b32 s3, s3, 8')
    e('v_add_u32 v1, s3, v0')
    e('v_and_b32 v2, 15, v1')
    e('v_bfe_u32 v3, v1, 8, 5')
    e('v_lshl_add_u32 v2, v3, 4, v2')
    e('v_lshlrev_b32 v2, 8, v2')
    e('v_bfe_u32 v3, v1, 6, 2')
    e('v_lshl_add_u32 v2, v3, 6, v2')
    e('v_bfe_u32 v3, v1, 4, 2')
    e('v_lshl_add_u32 v2, v3, 3, v2')
    e('v_lshrrev_b32 v3, 13, v1')
    e('v_lshl_add_u32 v2, v3, 19, v2')
    e('s_mov_b32 s28, %d' % (1536 * 256))
    e('buffer_load_dwordx2 v[8:9], v2, s[16:19], s28 offen')
    e('buffer_load_dwordx2 v[10:11], v2, s[16:19], s28 offen offset:32')
    e('v_lshlrev_b32 v1, 4, v1')
    e('s_mov_b32 s29, %d' % KF_OFF)
    e('s_waitcnt vmcnt(0)')
    e('buffer_store_dwordx4 v[8:11], v1, s[24:27], s29 offen')
    e('s_endpgm')
    k.label('L_prep_v')
    e('s_sub_u32 s3, s2, 384')
    e('s_lshl_b32 s3, s3, 8')
    e('v_add_u32 v1, s3, v0')
    e('v_and_b32 v2, 15, v1')
    e('v_bfe_u32 v3, v1, 6, 3')
    e('v_lshl_add_u32 v2, v3, 4, v2')
    e('v_lshlrev_b32 v2, 1, v2')
    e('v_bfe_u32 v3, v1, 9, 4')
    e('v_lshl_add_u32 v2, v3, 13, v2')
    e('v_bfe_u32 v3, v1, 4, 2')
    e('v_lshl_add_u32 v2, v3, 10, v2')
    e('v_lshrrev_b32 v3, 13, v1')
    e('v_lshl_add_u32 v2, v3, 19, v2')
    e('s_mov_b32 s28, %d' % (1536 * 256))
    e('s_mov_b32 s30, %d' % (1552 * 256))
    for j in range(8):
        e('buffer_load_ushort v%d, v2, s[20:23], %s offen offset:%d' % (16 + j, 's28' if j < 4 else 's30', 256 * (j % 4)))
    e('v_lshlrev_b32 v1, 4, v1')
    e('s_mov_b32 s29, %d' % VF_OFF)
    e('s_waitcnt vmcnt(0)')
    for j in range(4):
        e('v_lshl_or_b32 v%d, v%d, 16, v%d' % (8 + j, 17 + 2 * j, 16 + 2 * j))
    e('buffer_store_dwordx4 v[8:11], v1, s[24:27], s29 offen')
    k.label('L_prep_done')
    e('s_endpgm')
    return k


def stamp_store(k, base_s, n, wave_s, srd_s, slot):
    e = k.e
    e('s_waitcnt lgkmcnt(0)')
    e('s_lshl_b32 s90, s2, 3')
    e('s_add_u32 s90, s90, s%d' % wave_s)
    e('s_lshl_b32 s90, s90, 6')
    e('s_add_u32 s90, s90, %d' % (56 * MB + slot * 131072))
    e('v_mov_b32 v1, 0')
    for i in range(n):
        e('v_mov_b32 v2, s%d' % (base_s + i))
        e('buffer_store_dword v2, v1, s[%d:%d], s90 offen offset:%d' % (srd_s, srd_s + 3, 4 * i))
    e('s_waitcnt vmcnt(0)')


def gen_main(stamp=0):
    k = Kern('main')
    e = k.e
    vWq, vW1, vB = 4, 8, 12
    vA = 16
    vL = 20
    AF, BR = 32, 96
    S0, P0, KF, VF, NEGM, ONES, LA, TMP = 32, 96, 128, 160, 192, 208, 212, 228
    QF = 128
    nst = [0]

    def stampit():
        if stamp:
            e('s_memtime s[%d:%d]' % (64 + 2 * nst[0], 65 + 2 * nst[0]))
            nst[0] += 1

    e('s_cmp_ge_u32 s2, 256')
    e('s_cbranch_scc1 L_main_done')
    stampit()
    if stamp:
        e('s_memrealtime s[60:61]')
    e('s_load_dwordx2 s[44:45], s[0:1], %d' % A_WQ)
    e('s_load_dwordx2 s[46:47], s[0:1], %d' % A_W1)
    e('s_load_dwordx2 s[48:49], s[0:1], %d' % A_WS)
    e('v_lshrrev_b32 v1, 6, v0')
    e('v_and_b32 v0, 63, v0')
    e('v_readfirstlane_b32 s42, v1')
    e('s_and_b32 s50, s2, 7')
    e('s_lshr_b32 s51, s2, 3')
    e('s_lshl_b32 s52, s50, 2')
    e('s_and_b32 s53, s51, 3')
    e('s_add_u32 s52, s52, s53')
    e('s_lshr_b32 s53, s51, 2')
    e('s_and_b32 s54, s52, 1')
    e('s_lshr_b32 s55, s52, 1')
    e('s_lshl_b32 s56, s53, 4')
    e('s_lshl_b32 s57, s42, 2')
    e('s_add_u32 s56, s56, s57')
    e('v_lshrrev_b32 v1, 4, v0')
    e('v_bfe_u32 v2, v0, 2, 2')
    e('v_and_b32 v3, 3, v0')
    e('v_lshlrev_b32 v%d, 4, v0' % vL)
    e('v_add_u32 v%d, 0x10000, v%d' % (vL + 1, vL))
    e('v_add_u32 v%d, 0x20000, v%d' % (vL + 2, vL))
    e('v_lshlrev_b32 v23, 13, v2')
    e('v_lshl_add_u32 v23, v1, 6, v23')
    e('s_lshl_b32 s57, s42, 17')
    e('s_lshl_b32 s58, s52, 8')
    e('s_add_u32 s57, s57, s58')
    e('v_add_u32 v23, s57, v23')
    e('v_lshlrev_b32 v24, 4, v3')
    e('v_xor_b32 v25, 32, v24')
    e('v_add_u32 v%d, v23, v24' % vWq)
    e('v_add_u32 v%d, %d, v%d' % (vWq + 1, 4 * 8192 - 1024, vWq))
    e('v_add_u32 v%d, v23, v25' % (vWq + 2))
    e('v_add_u32 v%d, %d, v%d' % (vWq + 2, 2 * (4 * 8192 - 1024), vWq + 2))
    e('v_add_u32 v%d, %d, v%d' % (vWq + 3, 4 * 8192 - 1024, vWq + 2))
    e('s_lshl_b32 s57, s54, 2')
    e('v_cmp_eq_u32 vcc, 3, v1')
    e('v_add_u32 v26, s57, v1')
    e('v_mul_u32_u24 v23, 7168, v2')
    e('v_cndmask_b32 v26, v26, v1, vcc')
    e('v_lshl_add_u32 v23, v26, 6, v23')
    e('s_mul_i32 s57, s42, %d' % (16 * 7168))
    e('s_mul_i32 s58, s55, 448')
    e('s_add_u32 s57, s57, s58')
    e('v_add_u32 v23, s57, v23')
    e('v_add_u32 v%d, v23, v24' % vW1)
    e('v_add_u32 v%d, %d, v%d' % (vW1 + 1, 4 * 7168 - 1024, vW1))
    e('v_add_u32 v%d, v23, v25' % (vW1 + 2))
    e('v_add_u32 v%d, %d, v%d' % (vW1 + 2, 2 * (4 * 7168 - 1024), vW1 + 2))
    e('v_add_u32 v%d, %d, v%d' % (vW1 + 3, 4 * 7168 - 1024, vW1 + 2))
    e('s_lshl_b32 s57, s54, 16')
    e('v_add_u32 v%d, s57, v%d' % (vB, vL))
    e('v_add_u32 v%d, 0x8000, v%d' % (vB + 1, vB))
    e('v_xor_b32 v%d, 0x10000, v%d' % (vB + 2, vB))
    e('v_xor_b32 v%d, 0x10000, v%d' % (vB + 3, vB + 1))
    e('v_lshlrev_b32 v23, 11, v1')
    e('v_lshl_add_u32 v23, v2, 6, v23')
    e('v_lshl_add_u32 v23, v3, 3, v23')
    e('v_and_b32 v24, 1, v1')
    e('v_lshl_add_u32 v%d, v24, 5, v23' % vA)
    e('v_xor_b32 v%d, 32, v%d' % (vA + 1, vA))
    e('v_add_u32 v%d, 0x10000, v%d' % (vA + 2, vA))
    e('v_add_u32 v%d, 0x10000, v%d' % (vA + 3, vA + 1))
    e('s_waitcnt lgkmcnt(0)')
    srd(k, 4, 44, 45, 8 * MB)
    srd(k, 8, 46, 47, 1024 * 7168)
    e('s_lshl_b32 s57, s56, 15')
    e('s_add_u32 s57, s57, %d' % XN_OFF) if XN_OFF else None
    srd(k, 12, 48, 49, 131072, off='s57')
    srd(k, 16, 48, 49, 64 * MB)
    e('s_lshl_b32 s24, s42, 12')
    e('s_lshl_b32 s43, s42, 11')
    e('s_lshr_b32 s57, s52, 3')
    e('s_lshl_b32 s57, s57, 17')
    e('s_add_u32 s57, s57, s43')
    e('s_add_u32 s40, s57, %d' % KF_OFF)
    e('s_add_u32 s41, s57, %d' % VF_OFF)

    def wdma(t, part):
        b = t % 3
        so = 's20' if part == 0 else 's21'
        vo = vWq if part == 0 else vW1
        sr = 's[4:7]' if part == 0 else 's[8:11]'
        stride = 64 * (8192 if part == 0 else 7168)
        out = []

        def first():
            e('s_mov_b32 %s, %d' % (so, t * stride))
            e('s_add_u32 m0, s24, %d' % (b * 32768 + part * 16384))
        out.append(first)
        for i in range(4):
            out.append(lambda i=i: e('buffer_load_dwordx4 v%d, %s, %s offen offset:%d lds' % (vo + i, sr, so, 1024 * i),
                                     tag=('W', t), lds_w=('W', t), slots=[4 * b + 2 * part, 4 * b + 2 * part + 1]))
        return out

    def bloads(S):
        out = []
        for j in range(4):
            r = BR + (S % 4) * 16 + 4 * j

            def f(j=j, r=r):
                if j == 0 and S % 4 == 0:
                    e('s_mov_b32 s22, %d' % (S * 1024))
                e('buffer_load_dwordx4 %s, v%d, s[12:15], s22 offen offset:%d' % (vr(r), vB + j, (S % 4) * 1024), tag=('B', S, j))
            out.append(f)
        return out

    slot_of = {}

    def kvdma(item, slot):
        kind, u = item
        slot_of[item] = slot
        out = []

        def first():
            e('s_add_u32 s26, %s, %d' % ('s40' if kind == 'K' else 's41', u * 8192))
            e('s_add_u32 m0, s43, %d' % (slot * 8192))
        out.append(first)
        for i in range(2):
            out.append(lambda i=i: e('buffer_load_dwordx4 v%d, s[16:19], s26 offen offset:%d lds' % (vL, 1024 * i),
                                     tag=item, lds_w=item, slot=slot))
        return out

    def run(lst):
        for f in lst:
            f()
            if k.trace[-1].kind == 'salu' and k.trace[-1].w[0] == ('m0', 0):
                e('s_nop 0')

    need_order = [('K', 0), ('K', 1), ('K', 2)]
    for u in range(16):
        need_order.append(('V', u))
        if u + 3 < 16:
            need_order.append(('K', u + 3))
    pending = list(need_order)

    def aread(t, s, f):
        b = t % 3
        part, nb, half = f >> 3, (f >> 1) & 3, f & 1
        base = vA + half + (2 if b == 2 else 0)
        out = []
        for jj in range(2):
            off = (32768 if b == 1 else 0) + part * 16384 + s * 8192 + jj * 1024 + nb * 256
            r = AF + 4 * f + 2 * jj
            out.append(lambda r=r, off=off, jj=jj: e('ds_read_b64_tr_b16 %s, v%d offset:%d' % (vr(r, 2), base, off),
                                                    tag=('A', t, s, f, jj), lds_r=('W', t)))
        return out

    def acc_of(f, j):
        if f < 8:
            return (f * 4 + j) * 4
        if f < 14:
            return 128 + ((f - 8) * 4 + j) * 4
        return 224 + ((f - 14) * 2 + j) * 4

    run(wdma(0, 0)); run(wdma(0, 1)); run(bloads(0)); run(bloads(1))
    run(wdma(1, 0)); run(wdma(1, 1)); run(bloads(2)); run(wdma(2, 0))
    e('s_lshl_b32 s57, s54, 1')
    e('s_mul_i32 s58, s55, 7')
    e('s_lshl_b32 s59, s54, 2')
    e('s_add_u32 s59, s59, s58')
    e('s_add_u32 s58, s58, 3')
    for j in range(4):
        e('s_xor_b32 s26, s57, %d' % j)
        e('s_add_u32 s26, s26, s56')
        e('s_mul_i32 s27, s26, 112')
        e('s_add_u32 s28, s27, s59')
        e('s_lshl_b32 s28, s28, 10')
        e('s_add_u32 s%d, s28, %d' % (30 + j, H_OFF))
        if j < 2:
            e('s_add_u32 s28, s27, s58')
            e('s_lshl_b32 s28, s28, 10')
            e('s_add_u32 s%d, s28, %d' % (34 + j, H_OFF))
        e('s_lshl_b32 s27, s26, 7')
        e('s_lshl_b32 s28, s52, 2')
        e('s_add_u32 s27, s27, s28')
        e('s_lshl_b32 s27, s27, 10')
        e('s_add_u32 s%d, s27, %d' % (36 + j, O_OFF))
    k.wait(vm=[('W', 0)])
    e('s_barrier')
    stampit()
    for f in range(16):
        run(aread(0, 0, f))

    spare = list(range(12, 20))
    for t in range(16):
        for s in range(2):
            S = 2 * t + s
            vm = []
            if s == 0:
                if t + 2 < 16:
                    vm.append(wdma(t + 2, 1))
            else:
                if t + 3 < 16:
                    vm.append(wdma(t + 3, 0))
            if S + 3 < 32:
                bl = bloads(S + 3)
                vm += [[x] for x in bl]
            kv = []
            if 2 <= t < 10 and s == 0 and spare:
                kv.append(kvdma(pending.pop(0), spare.pop(0)))
            if t >= 13 and s == 1:
                b = t % 3
                kv += [kvdma(pending.pop(0), 4 * b + i) for i in range(2)]
            if t >= 14 and s == 0:
                b = (t - 1) % 3
                kv += [kvdma(pending.pop(0), 4 * b + 2 + i) for i in range(2)]
            seq = []
            groups = [g for g in vm if len(g) > 1] + kv
            singles = [g[0] for g in vm if len(g) == 1]
            flat = []
            for g in groups:
                flat.append((g[0], g[1]))
                for x in g[2:]:
                    flat.append((x,))
            allv = []
            ns, nf = len(singles), len(flat)
            while flat or singles:
                if flat:
                    allv.append(flat.pop(0))
                if singles:
                    allv.append((singles.pop(0),))
            first_slot = 2 if s == 1 else 0
            place = spread(allv, 16, first_slot, 15) if allv else {}
            held = []
            for f in range(16):
                js = range(4) if f < 14 else range(2)
                for j in js:
                    tags_l = [('A', t, s, min(f + 3, 15), 1)] if (j == 0 and f % 4 == 0) else []
                    tags_v = [('B', S, 3)] if (f == 0 and j == 0) else []
                    if tags_l or tags_v:
                        k.wait(vm=tags_v, lg=tags_l)
                    d = acc_of(f, j)
                    br = BR + (S % 4) * 16 + 4 * j
                    e('%s %s, %s, %s, %s' % (MFMA, vr(d, 4, 'a'), vr(AF + 4 * f), vr(br), '0' if S == 0 else vr(d, 4, 'a')))
                    if j == 1:
                        for it in place.get(f, []):
                            run(list(it))
                if s == 0:
                    run(aread(t, 1, f))
                else:
                    if f < 2:
                        if t < 15:
                            held += aread(t + 1, 0, f)
                        if f == 1:
                            k.wait(vm=[('W', t + 1)] if t < 15 else [], lg0=True)
                            e('s_barrier')
                            run(held)
                    elif t < 15:
                        run(aread(t + 1, 0, f))
    stampit()
    kvq = [kvdma(pending.pop(0), 2 + i) for i in range(2)]
    for g in kvq:
        run(g)

    T = AF
    e('s_nop 7')

    def silu_store(fa, j, sbase, imm):
        accs = [acc_of(fa, j) + r for r in range(4)] + [acc_of(fa + 1, j) + r for r in range(4)]
        x, y = T, T + 8
        for i in range(8):
            e('v_accvgpr_read_b32 v%d, a%d' % (x + i, accs[i]))
        for i in range(8):
            e('v_mul_f32 v%d, %s, v%d' % (y + i, f32(-LOG2E), x + i))
        for i in range(8):
            e('v_exp_f32 v%d, v%d' % (y + i, y + i))
        for i in range(8):
            e('v_add_f32 v%d, 1.0, v%d' % (y + i, y + i))
        for i in range(8):
            e('v_rcp_f32 v%d, v%d' % (y + i, y + i))
        for i in range(8):
            e('v_mul_f32 v%d, v%d, v%d' % (x + i, x + i, y + i))
        o = T + 16 + 4 * (silu_store.n % 8)
        silu_store.n += 1
        for i in range(4):
            e('v_cvt_pk_bf16_f32 v%d, v%d, v%d' % (o + i, x + 2 * i, x + 2 * i + 1))
        e('buffer_store_dwordx4 %s, v%d, s[16:19], s%d offen offset:%d' % (vr(o), vL, sbase, imm))
    silu_store.n = 0
    for j in range(4):
        for nb in range(3):
            silu_store(8 + 2 * nb, j, 30 + j, 1024 * nb)
    for j in range(2):
        silu_store(14, j, 34 + j, 0)
    stampit()
    e('s_mov_b32 s27, %s' % f32(LOG2E / (128 ** 0.5)))
    X = TMP
    for j in range(4):
        for ds in range(4):
            accs = [acc_of(2 * ds, j) + r for r in range(4)] + [acc_of(2 * ds + 1, j) + r for r in range(4)]
            for i in range(8):
                e('v_accvgpr_read_b32 v%d, a%d' % (X + i, accs[i]))
            for i in range(8):
                e('v_mul_f32 v%d, s27, v%d' % (X + i, X + i))
            for i in range(4):
                e('v_cvt_pk_bf16_f32 v%d, v%d, v%d' % (X + 8 + i, X + 2 * i, X + 2 * i + 1))
            for i in range(4):
                e('v_accvgpr_write_b32 a%d, v%d' % (QF + (j * 4 + ds) * 4 + i, X + 8 + i))
    for i in range(4):
        e('v_mov_b32 v%d, 0x3f803f80' % (ONES + i))
    stampit()

    def kvread(item, fi):
        kind, u = item
        a = slot_of[item] * 8192 + fi * 1024
        r = (KF if kind == 'K' else VF) + 4 * fi
        return lambda: e('ds_read_b128 %s, v%d offset:%d' % (vr(r), vL + (a >> 16), a & 0xffff), tag=(kind, u, fi), lds_r=item)

    def qk_groups(u, czero=False):
        out = []
        for kb in range(2):
            for ds in range(4):
                fi = kb * 4 + ds
                ms = []
                for j in range(4):
                    d = S0 + (u % 2) * 32 + (kb * 4 + j) * 4
                    c = vr(d) if ds else ('0' if czero else vr(NEGM + 4 * j))
                    ms.append('%s %s, %s, %s, %s' % (MFMA, vr(d), vr(KF + 4 * fi), vr(QF + (j * 4 + ds) * 4, 4, 'a'), c))
                out.append((('K', u, fi), ms, (('K', u + 1), fi) if u + 1 < 16 else None))
        return out

    def pv_groups(u):
        out = []
        for db in range(8):
            ms = []
            for j in range(4):
                d = (db * 4 + j) * 4
                ms.append('%s %s, %s, %s, %s' % (MFMA, vr(d, 4, 'a'), vr(VF + 4 * db), vr(P0 + (u % 2) * 16 + 4 * j), '0' if u == 0 else vr(d, 4, 'a')))
            out.append((('V', u, db), ms, (('V', u + 1), db) if u + 1 < 16 else None))
        ms = []
        for j in range(4):
            d = LA + 4 * j
            ms.append('%s %s, %s, %s, %s' % (MFMA, vr(d), vr(ONES), vr(P0 + (u % 2) * 16 + 4 * j), '0' if u == 0 else vr(d)))
        out.append((None, ms, None))
        return out

    def sm_ops(u, addm=False):
        ops = []
        for j in range(4):
            regs = [S0 + (u % 2) * 32 + (kb * 4 + j) * 4 + r for kb in range(2) for r in range(4)]
            if addm:
                for r in regs:
                    ops.append('v_add_f32 v%d, v%d, v%d' % (r, r, NEGM + 4 * j))
            for r in regs:
                ops.append('v_exp_f32 v%d, v%d' % (r, r))
        res = []
        per = len(ops) // 4
        for j in range(4):
            res += ops[j * per:(j + 1) * per]
            if j > 0:
                res += cvts(u, j - 1)
        res += ['s_nop 0'] if False else []
        res += cvts(u, 3)
        return res

    def cvts(u, j):
        regs = [S0 + (u % 2) * 32 + (kb * 4 + j) * 4 + r for kb in range(2) for r in range(4)]
        return ['v_cvt_pk_bf16_f32 v%d, v%d, v%d' % (P0 + (u % 2) * 16 + 4 * j + i, regs[2 * i], regs[2 * i + 1]) for i in range(4)]

    freed_reads = []

    def run_groups(groups, valu, barrier_items=None, extra=None):
        n = sum(len(g[1]) for g in groups)
        fill = spread(valu, n, 0, n - 1) if valu else {}
        idx = 0
        held = []
        vmq = []
        for gi, (wt, ms, rl) in enumerate(groups):
            if gi % 4 == 0:
                tg = [g[0] for g in groups[gi:gi + 4] if g[0] is not None]
                if tg:
                    k.wait(lg=tg)
            for mi, m in enumerate(ms):
                e(m)
                for x in fill.get(idx, []):
                    e(x)
                idx += 1
                if mi == 1 and vmq:
                    run(list(vmq.pop(0)))
            if rl is not None:
                if barrier_items is not None and gi < 2:
                    held.append(kvread(*rl))
                else:
                    kvread(*rl)()
            if barrier_items is not None and gi == 1:
                k.wait(vm=barrier_items, lg0=True)
                e('s_barrier')
                run(held)
                while freed_reads and pending:
                    it = freed_reads.pop(0)
                    g = kvdma(pending.pop(0), slot_of[it])
                    vmq.append((g[0], g[1]))
                    vmq.append((g[2],))
        assert not vmq

    k.wait(vm=[('K', 0), ('K', 1), ('K', 2), ('V', 0)])
    e('s_barrier')
    for fi in range(8):
        kvread(('K', 0), fi)()
    for fi in range(8):
        kvread(('V', 0), fi)()
    run_groups(qk_groups(0, czero=True), [])
    e('s_nop 7')
    for j in range(4):
        regs = [S0 + (kb * 4 + j) * 4 + r for kb in range(2) for r in range(4)]
        m = TMP + j
        e('v_max3_f32 v%d, v%d, v%d, v%d' % (m, regs[0], regs[1], regs[2]))
        e('v_max3_f32 v%d, v%d, v%d, v%d' % (m, m, regs[3], regs[4]))
        e('v_max3_f32 v%d, v%d, v%d, v%d' % (m, m, regs[5], regs[6]))
        e('v_max_f32 v%d, v%d, v%d' % (m, m, regs[7]))
    for sw in ('v_permlane16_swap_b32', 'v_permlane32_swap_b32'):
        for j in range(4):
            e('v_mov_b32 v%d, v%d' % (TMP + 4 + j, TMP + j))
        e('s_nop 0')
        for j in range(4):
            e('%s v%d, v%d' % (sw, TMP + j, TMP + 4 + j))
        for j in range(4):
            e('v_max_f32 v%d, v%d, v%d' % (TMP + j, TMP + j, TMP + 4 + j))
    for j in range(4):
        for r in range(4):
            e('v_sub_f32 v%d, 0, v%d' % (NEGM + 4 * j + r, TMP + j))
    e('s_nop 1')
    run_groups(qk_groups(1), sm_ops(0, addm=True))
    freed_reads += [('K', 0), ('K', 1), ('K', 2), ('V', 0)]
    for u in range(16):
        groups = []
        if u + 2 < 16:
            groups += qk_groups(u + 2)
        groups += pv_groups(u)
        valu = sm_ops(u + 1) if u + 1 < 16 else []
        bi = None
        if u % 2 == 0:
            bi = [it for it in [('K', u + 3), ('K', u + 4), ('V', u + 1), ('V', u + 2)] if it[1] < 16]
        run_groups(groups, valu, barrier_items=bi)
        if u + 3 < 16:
            freed_reads.append(('K', u + 3))
        if u + 1 < 16:
            freed_reads.append(('V', u + 1))
    assert not pending
    stampit()
    e('s_nop 7')
    for j in range(4):
        e('v_rcp_f32 v%d, v%d' % (TMP + j, LA + 4 * j))
    X = S0
    n = 0
    for j in range(4):
        for i in range(4):
            accs = [((2 * i) * 4 + j) * 4 + r for r in range(4)] + [((2 * i + 1) * 4 + j) * 4 + r for r in range(4)]
            for q in range(8):
                e('v_accvgpr_read_b32 v%d, a%d' % (X + q, accs[q]))
            for q in range(8):
                e('v_mul_f32 v%d, v%d, v%d' % (X + q, X + q, TMP + j))
            o = X + 8 + 4 * (n % 8)
            n += 1
            for q in range(4):
                e('v_cvt_pk_bf16_f32 v%d, v%d, v%d' % (o + q, X + 2 * q, X + 2 * q + 1))
            e('buffer_store_dwordx4 %s, v%d, s[16:19], s%d offen offset:%d' % (vr(o), vL, 36 + j, 1024 * i))
    stampit()
    if stamp:
        e('s_waitcnt vmcnt(0)')
        stampit()
        e('s_memrealtime s[62:63]')
        stamp_store(k, 60, 4 + 2 * nst[0] if 4 + 2 * nst[0] <= 16 else 16, 42, 16, 0)
        if 4 + 2 * nst[0] > 16:
            stamp_store(k, 76, 4 + 2 * nst[0] - 16, 42, 16, 1)
    k.label('L_main_done')
    e('s_endpgm')
    k.nv = 256
    k.na = 256
    k.lds = 163840
    k.block = 256
    return k


def gen_out(stamp=0):
    k = Kern('outk')
    e = k.e
    vW = 4
    vB = 8
    vA = 10
    vX = 14
    vL = 16
    AF = 20
    BR = 52
    XR = 180
    nst = [0]

    def stampit():
        if stamp:
            e('s_memtime s[%d:%d]' % (64 + 2 * nst[0], 65 + 2 * nst[0]))
            nst[0] += 1
    e('s_cmp_ge_u32 s2, 256')
    e('s_cbranch_scc1 L_out_done')
    stampit()
    if stamp:
        e('s_memrealtime s[60:61]')
    e('s_load_dwordx2 s[32:33], s[0:1], %d' % A_X)
    e('s_load_dwordx2 s[34:35], s[0:1], %d' % A_WO)
    e('s_load_dwordx2 s[36:37], s[0:1], %d' % A_W2)
    e('s_load_dwordx2 s[38:39], s[0:1], %d' % A_OUT)
    e('s_load_dwordx2 s[40:41], s[0:1], %d' % A_WS)
    e('v_lshrrev_b32 v1, 6, v0')
    e('v_and_b32 v0, 63, v0')
    e('v_readfirstlane_b32 s42, v1')
    e('s_and_b32 s43, s2, 7')
    e('s_lshr_b32 s44, s2, 3')
    e('s_lshr_b32 s45, s43, 2')
    e('s_and_b32 s46, s43, 3')
    e('s_lshl_b32 s46, s46, 2')
    e('s_lshr_b32 s47, s44, 3')
    e('s_add_u32 s46, s46, s47')
    e('s_and_b32 s47, s44, 7')
    e('v_lshrrev_b32 v1, 4, v0')
    e('v_bfe_u32 v2, v0, 2, 2')
    e('v_and_b32 v3, 3, v0')
    e('v_lshlrev_b32 v%d, 4, v0' % vL)
    e('v_lshlrev_b32 v17, 11, v2')
    e('v_lshl_add_u32 v17, v1, 6, v17')
    e('s_lshl_b32 s52, s42, 16')
    e('s_lshl_b32 s53, s47, 8')
    e('s_add_u32 s52, s52, s53')
    e('v_add_u32 v17, s52, v17')
    e('v_lshlrev_b32 v18, 4, v3')
    e('v_xor_b32 v19, 32, v18')
    e('v_add_u32 v%d, v17, v18' % vW)
    e('v_add_u32 v%d, v17, v19' % (vW + 1))
    e('v_add_u32 v%d, %d, v%d' % (vW + 1, 8192 - 1024, vW + 1))
    e('v_add_u32 v%d, %d, v%d' % (vW + 2, 2 * (8192 - 1024), vW))
    e('v_add_u32 v%d, %d, v%d' % (vW + 3, 2 * (8192 - 1024), vW + 1))
    e('v_lshlrev_b32 v17, 10, v1')
    e('v_lshl_add_u32 v17, v2, 6, v17')
    e('v_lshl_add_u32 v17, v3, 3, v17')
    e('v_and_b32 v18, 1, v1')
    e('v_lshl_add_u32 v%d, v18, 5, v17' % vA)
    e('v_xor_b32 v%d, 32, v%d' % (vA + 1, vA))
    e('v_add_u32 v%d, 0x10000, v%d' % (vA + 2, vA))
    e('v_add_u32 v%d, 0x10000, v%d' % (vA + 3, vA + 1))
    e('v_and_b32 v17, 15, v0')
    e('v_lshlrev_b32 v17, 11, v17')
    e('v_and_b32 v18, 1, v1')
    e('v_lshl_add_u32 v17, v18, 5, v17')
    e('v_lshrrev_b32 v18, 1, v1')
    e('v_lshl_add_u32 v17, v18, 4, v17')
    e('s_lshl_b32 s52, s42, 16')
    e('s_lshl_b32 s53, s46, 18')
    e('s_add_u32 s52, s52, s53')
    e('s_lshl_b32 s53, s47, 8')
    e('s_add_u32 s52, s52, s53')
    e('v_add_u32 v%d, s52, v17' % vX)
    e('v_add_u32 v%d, 0x8000, v%d' % (vX + 1, vX))
    e('s_waitcnt lgkmcnt(0)')
    e('s_cmp_eq_u32 s45, 0')
    e('s_cselect_b32 s4, s34, s36')
    e('s_cselect_b32 s5, s35, s37')
    e('s_mov_b32 s6, %d' % (3584 * 2048))
    e('s_cselect_b32 s6, %d, s6' % (4096 * 2048))
    e('s_mov_b32 s7, 0x00020000')
    e('s_mov_b32 s50, %d' % (3584 * 32))
    e('s_cselect_b32 s50, %d, s50' % (4096 * 32))
    e('s_mov_b32 s51, %d' % H_OFF)
    e('s_cselect_b32 s51, %d, s51' % O_OFF)
    e('s_cselect_b32 s26, 8, 7')
    e('s_lshl_b32 s52, s46, 3')
    e('s_lshl_b32 s53, s42, 1')
    e('s_add_u32 s52, s52, s53')
    e('s_mul_i32 s52, s52, s50')
    e('s_add_u32 s52, s52, s51')
    e('s_add_u32 s8, s40, s52')
    e('s_addc_u32 s9, s41, 0')
    e('s_mov_b32 s10, s50')
    e('s_mov_b32 s11, 0x00020000')
    e('s_add_u32 s56, s8, s50')
    e('s_addc_u32 s57, s9, 0')
    e('s_mov_b32 s58, s50')
    e('s_mov_b32 s59, 0x00020000')
    srd(k, 12, 32, 33, 4 * MB)
    srd(k, 16, 38, 39, 4 * MB)
    srd(k, 20, 40, 41, 64 * MB)
    e('s_lshl_b32 s28, s42, 13')

    def run(lst):
        for f in lst:
            f()
            if k.trace[-1].kind == 'salu' and k.trace[-1].w[0] == ('m0', 0):
                e('s_nop 0')

    def wdma(t, g):
        u = t % 4
        so = 's24' if g == 0 else 's27'
        out = [lambda: e('s_add_u32 m0, s28, %d' % (u * 32768 + g * 4096))]
        for i in range(4):
            out.append(lambda i=i: e('buffer_load_dwordx4 v%d, s[4:7], %s offen offset:%d lds' % (vW + i, so, 1024 * i),
                                     tag=('W', t), lds_w=('W', t), slot=u))
        out.append(lambda: e('s_add_u32 %s, %s, %d' % (so, so, 128 * 2048)))
        return out

    def bload(t, s, j):
        r = BR + ((t % 4) * 8 + s * 2 + j) * 4

        def f():
            e('buffer_load_dwordx4 %s, v%d, %s, s25 offen offset:%d' % (vr(r), vL, 's[8:11]' if j == 0 else 's[56:59]', 1024 * s), tag=('B', t, s, j))
            if s == 3 and j == 1:
                e('s_add_u32 s25, s25, 4096')
        return f

    def aread(t, s, f):
        u = t % 4
        nb, half = f >> 1, f & 1
        base = vA + half + (2 if u >= 2 else 0)
        out = []
        for jj in range(2):
            off = (u % 2) * 32768 + s * 8192 + jj * 4096 + nb * 256
            r = AF + 4 * f + 2 * jj
            out.append(lambda r=r, off=off, jj=jj: e('ds_read_b64_tr_b16 %s, v%d offset:%d' % (vr(r, 2), base, off),
                                                    tag=('A', t, s, f, jj), lds_r=('W', t)))
        return out

    e('s_mov_b32 s24, 0')
    e('s_mov_b32 s27, %d' % (16 * 2048))
    e('s_mov_b32 s25, 0')
    for t in range(3):
        run(wdma(t, 0)); run(wdma(t, 1))
        for s in range(4):
            for j in range(2):
                bload(t, s, j)()
    run(wdma(3, 0))
    for i in range(64):
        e('v_accvgpr_write_b32 a%d, 0' % i)
    k.wait(vm=[('W', 0)])
    e('s_barrier')
    stampit()
    for f in range(8):
        run(aread(0, 0, f))

    def tile(t):
        for s in range(4):
            vm = {}
            vm.setdefault(1 if s != 3 else 3, []).append([bload(t + 3, s, 0)])
            vm.setdefault(5, []).append([bload(t + 3, s, 1)])
            if s in (0, 1):
                d = tile.d1 = wdma(t + 3, 1) if s == 0 else tile.d1
                if s == 0:
                    vm.setdefault(3, []).append(d[0:2])
                    vm.setdefault(7, []).append(d[2:3])
                else:
                    vm.setdefault(3, []).append(d[3:4])
                    vm.setdefault(7, []).append(d[4:6])
            if s == 3:
                d = wdma(t + 4, 0)
                vm.setdefault(2, []).append(d[0:2])
                vm.setdefault(4, []).append(d[2:3])
                vm.setdefault(6, []).append(d[3:4])
                vm.setdefault(7, []).append(d[4:6])
            held = []
            for f in range(8):
                for j in range(2):
                    tl = [('A', t, s, min(f + 1, 7), 1)] if (j == 0 and f % 2 == 0) else []
                    tv = [('B', t, s, 1)] if (f == 0 and j == 0) else []
                    if tl or tv:
                        k.wait(vm=tv, lg=tl)
                    d4 = (f * 2 + j) * 4
                    br = BR + ((t % 4) * 8 + s * 2 + j) * 4
                    e('%s %s, %s, %s, %s' % (MFMA, vr(d4, 4, 'a'), vr(AF + 4 * f), vr(br), vr(d4, 4, 'a')))
                    if j == 0:
                        for g in vm.get(f, []):
                            run(g)
                if s < 3:
                    run(aread(t, s + 1, f))
                else:
                    if f < 2:
                        held += aread(t + 1, 0, f)
                        if f == 1:
                            k.wait(vm=[('W', t + 1)], lg0=True)
                            e('s_barrier')
                            run(held)
                    else:
                        run(aread(t + 1, 0, f))

    def body(it):
        k.label('L_out_loop')
        for u in range(4):
            tile(4 * it + u)
        e('s_sub_u32 s26, s26, 1')
        e('s_cmp_lg_u32 s26, 0')
        e('s_cbranch_scc1 L_out_loop')

    k.loop(8, body)
    stampit()
    T = AF
    e('s_lshl_b32 s52, s46, 3')
    e('s_add_u32 s52, s52, s47')
    e('s_lshl_b32 s53, s52, 3')
    e('s_add_u32 s53, s53, s42')
    e('s_lshl_b32 s53, s53, 8')
    e('s_add_u32 s53, s53, %d' % FLAG_OFF)
    e('s_lshl_b32 s54, s52, 15')
    e('s_add_u32 s54, s54, s28')
    e('s_add_u32 s54, s54, %d' % G_OFF)
    e('s_lshl_b32 s55, s45, 22')
    e('s_add_u32 s48, s54, s55')
    e('s_xor_b32 s55, s55, %d' % (4 * MB))
    e('s_add_u32 s49, s54, s55')
    e('v_mov_b32 v17, 0')
    e('s_waitcnt vmcnt(0) lgkmcnt(0)')
    e('buffer_load_dword v18, v17, s[20:23], s53 offen sc1')
    for i in range(8):
        e('buffer_load_dwordx4 %s, v%d, s[12:15], 0 offen offset:%d' % (vr(XR + 4 * i), vX + (i & 1), 64 * (i >> 1)))
    P = T + 64
    Q = P + 32
    for i in range(64):
        e('v_accvgpr_read_b32 v%d, a%d' % (T + i, i))

    def src(nb, j, q):
        return T + ((2 * nb + (q >> 2)) * 2 + j) * 4 + (q & 3)
    for nb in range(4):
        for j in range(2):
            for q in range(4):
                e('v_cvt_pk_bf16_f32 v%d, v%d, v%d' % (P + (nb * 2 + j) * 4 + q, src(nb, j, 2 * q), src(nb, j, 2 * q + 1)))
    e('s_cmp_eq_u32 s45, 0')
    e('s_cbranch_scc1 L_out_nosilu')
    for i0 in range(0, 32, 4):
        a, b = T, T + 8
        for i in range(4):
            e('v_lshlrev_b32 v%d, 16, v%d' % (a + 2 * i, P + i0 + i))
            e('v_and_b32 v%d, 0xffff0000, v%d' % (a + 2 * i + 1, P + i0 + i))
        for i in range(8):
            e('v_mul_f32 v%d, %s, v%d' % (b + i, f32(-LOG2E), a + i))
        for i in range(8):
            e('v_exp_f32 v%d, v%d' % (b + i, b + i))
        for i in range(8):
            e('v_add_f32 v%d, 1.0, v%d' % (b + i, b + i))
        for i in range(8):
            e('v_rcp_f32 v%d, v%d' % (b + i, b + i))
        for i in range(8):
            e('v_mul_f32 v%d, v%d, v%d' % (a + i, a + i, b + i))
        for i in range(4):
            e('v_cvt_pk_bf16_f32 v%d, v%d, v%d' % (P + i0 + i, a + 2 * i, a + 2 * i + 1))
    k.label('L_out_nosilu')
    e('s_nop 1')
    for i0 in range(0, 32, 4):
        e('v_permlane16_swap_b32 v%d, v%d' % (P + i0, P + i0 + 2))
        e('v_permlane16_swap_b32 v%d, v%d' % (P + i0 + 1, P + i0 + 3))
    e('v_add_u32 v19, 4096, v%d' % vL)
    e('s_waitcnt vmcnt(8)')
    e('v_readfirstlane_b32 s55, v18')
    e('s_cmp_eq_u32 s55, 1')
    e('s_cbranch_scc1 L_out_combine')
    for i in range(8):
        e('buffer_store_dwordx4 %s, v%d, s[20:23], s48 offen offset:%d sc1' % (vr(P + 4 * i), vL if i < 4 else 19, 1024 * (i % 4)))
    e('s_waitcnt vmcnt(0)')
    e('v_mov_b32 v18, 1')
    e('s_mov_b64 exec, 1')
    e('buffer_atomic_add v18, v17, s[20:23], s53 offen sc0 sc1')
    e('s_waitcnt vmcnt(0)')
    e('s_mov_b64 exec, -1')
    e('v_readfirstlane_b32 s55, v18')
    e('s_cmp_eq_u32 s55, 1')
    e('s_cbranch_scc0 L_out_fin')
    k.label('L_out_combine')
    for i in range(8):
        e('buffer_load_dwordx4 %s, v%d, s[20:23], s49 offen offset:%d sc1' % (vr(Q + 4 * i), vL if i < 4 else 19, 1024 * (i % 4)))
    e('s_waitcnt vmcnt(0)')
    for i in range(32):
        e('v_lshlrev_b32 v2, 16, v%d' % (P + i))
        e('v_and_b32 v3, 0xffff0000, v%d' % (P + i))
        e('v_lshlrev_b32 v4, 16, v%d' % (Q + i))
        e('v_and_b32 v5, 0xffff0000, v%d' % (Q + i))
        e('v_mul_f32 v2, v2, v4')
        e('v_mul_f32 v3, v3, v5')
        e('v_cvt_pk_bf16_f32 v2, v2, v3')
        e('v_lshlrev_b32 v4, 16, v%d' % (XR + i))
        e('v_and_b32 v5, 0xffff0000, v%d' % (XR + i))
        e('v_and_b32 v3, 0xffff0000, v2')
        e('v_lshlrev_b32 v2, 16, v2')
        e('v_add_f32 v2, v2, v4')
        e('v_add_f32 v3, v3, v5')
        e('v_cvt_pk_bf16_f32 v%d, v2, v3' % (P + i))
        if i % 4 == 3:
            ii = i // 4
            e('buffer_store_dwordx4 %s, v%d, s[16:19], 0 offen offset:%d' % (vr(P + 4 * ii), vX + (ii & 1), 64 * (ii >> 1)))
    k.label('L_out_fin')
    if stamp:
        e('s_waitcnt vmcnt(0)')
        stampit()
        e('s_memrealtime s[62:63]')
        stamp_store(k, 60, 4 + 2 * nst[0], 42, 20, 2)
    k.label('L_out_done')
    e('s_endpgm')
    k.nv = 212
    k.na = 64
    k.lds = 131072
    k.block = 256
    return k
```
